```python
import torch

def _softmax(x, axis=-1):
    return torch.softmax(x, dim=axis)
def _gelu(x):
    return torch.nn.functional.gelu(x, approximate="tanh")
def _silu(x):
    return torch.nn.functional.silu(x)
def _sigmoid(x):
    return torch.sigmoid(x)
def _layernorm(x, axis=-1, eps=1e-5):
    m = x.mean(dim=axis, keepdim=True)
    v = x.var(dim=axis, keepdim=True, unbiased=False)
    return (x - m) / torch.sqrt(v + eps)
def _scatter_add(tgt, idx, src, axis=0):
    return tgt.clone().index_add_(axis, idx, src)
def _segment_sum(src, seg, n):
    out = torch.zeros((n,) + src.shape[1:], dtype=src.dtype)
    return out.index_add_(0, seg, src)
def _pad(x, pw):
    flat = tuple(v for pair in reversed(pw) for v in pair)
    return torch.nn.functional.pad(x, flat)

kernel_name = 'parallel_sum__softmax_full_mha__moe_arch_mod__prompt'

def setup_inputs():

    _w = (lambda a: (lambda t: t.to(torch.bfloat16) if t.is_floating_point() else t)(torch.as_tensor(a)))
    def _A_setup():
        B, S, D = 1, 2048, 640
        return {
            "x": _w((lambda *s: torch.randn(*s, dtype=torch.bfloat16) * 0.05)(B, S, D)),
            "wqkv": _w((lambda *s: torch.randn(*s, dtype=torch.bfloat16) * 0.1)(D, 3 * D)),
            "wo": _w((lambda *s: torch.randn(*s, dtype=torch.bfloat16) * 0.05)(D, D)),
        }
    _A_in = _A_setup()

    def _B_setup():
        B, S, D, F, C = 1, 2048, 640, 1728, 8
        return {
            "x": _w((lambda *s: torch.randn(*s, dtype=torch.bfloat16) * 0.05)(B, S, D)),
            "w_r": _w((lambda *s: torch.randn(*s, dtype=torch.bfloat16) * 1.6)(D)),
            "w_gate": _w((lambda *s: torch.randn(*s, dtype=torch.bfloat16) * 0.1)(D, F)),
            "w_up": _w((lambda *s: torch.randn(*s, dtype=torch.bfloat16) * 0.1)(D, F)),
            "w_down": _w((lambda *s: torch.randn(*s, dtype=torch.bfloat16) * 0.1)(F, D)),
        }
    _B_in = _B_setup()

    return {
        "A_x": _A_in["x"],
        "A_wqkv": _A_in["wqkv"],
        "A_wo": _A_in["wo"],
        "B_x": _B_in["x"],
        "B_w_r": _B_in["w_r"],
        "B_w_gate": _B_in["w_gate"],
        "B_w_up": _B_in["w_up"],
        "B_w_down": _B_in["w_down"],
    }

def reference(A_x, A_wqkv, A_wo, B_x, B_w_r, B_w_gate, B_w_up, B_w_down):
    def _A_ref(x, wqkv, wo):
        B, S, D = x.shape
        H = 32; Dh = D // H
        qkv = (lambda x, *d: x.permute(*d))((x @ wqkv).reshape(B, S, 3, H, Dh), 2, 0, 3, 1, 4)
        q, k, v = qkv[0], qkv[1], qkv[2]
        scale = Dh ** -0.5
        scores = torch.einsum("bhqd,bhkd->bhqk", q, k) * scale
        p = _softmax(scores, axis=-1)
        o = torch.einsum("bhqk,bhkd->bhqd", p, v)
        return (lambda x, *d: x.permute(*d))(o, 0, 2, 1, 3).reshape(B, S, D) @ wo

    def _B_ref(x, w_r, w_gate, w_up, w_down):
        B, S, D = x.shape
        C = 8
        r = x @ w_r
        idx = torch.argsort(-r, axis=-1)[:, :C]
        idx_e = (lambda x, n, axis: torch.repeat_interleave(x, n, dim=axis))(idx.reshape(B, C, 1), D, axis=2)
        x_sel = (lambda x, i, axis: torch.take_along_dim(x, i, dim=axis))(x, idx_e, axis=1)
        g = _silu(x_sel @ w_gate)
        u = x_sel @ w_up
        y = (g * u) @ w_down
        r_sel = _sigmoid((lambda x, i, axis: torch.take_along_dim(x, i, dim=axis))(r, idx, axis=1))
        y = y * r_sel.reshape(B, C, 1)
        b_off = (torch.arange(B) * S).reshape(B, 1)
        flat_idx = (idx + b_off).reshape(B * C)
        zero = (x * 0.0).reshape(B * S, D)
        upd = _scatter_add(zero, flat_idx, y.reshape(B * C, D), axis=0)
        return x + upd.reshape(B, S, D)

    x = A_x
    xn = _layernorm(x, axis=-1)
    return x + _A_ref(xn, A_wqkv, A_wo) + _B_ref(xn, B_w_r, B_w_gate, B_w_up, B_w_down)
```

```python
import re, sys
src = open(sys.argv[1]).read()
T = int(sys.argv[3]); listform = len(sys.argv) > 4
NAME = "parallel_sum__softmax_full_mha__moe_arch_mod__prompt_kernel"
hdr, rest = src.split('.amdgcn_target', 1)
hdr = "\n".join(l for l in hdr.split("\n") if "@launch" not in l)
hdr += ("; @launch kernel=%s grid=(768,1,1) block=(768,1,1) lds=160896\n" % NAME) if listform else "; @launch grid=(768,1,1) block=(768,1,1) lds=160896\n"
text = rest.split('.text\n', 1)[1].split('.section .rodata', 1)[0]
i2 = text.index(".p2align 8\n.type attn_kernel"); i3 = text.index(".p2align 8\n.type oproj_kernel")
k1, k2, k3 = text[:i2], text[i2:i3], text[i3:]
def strip(k): return re.sub(r"\.type \w+,@function\n", "", k)
k1 = strip(k1).replace("s_endpgm", "s_branch done_role").replace("buffer_store_dword v119, v117, s[20:23], s31 offen\n", "buffer_store_dword v119, v117, s[20:23], s31 offen sc1\n")
k2 = strip(k2).replace("s_endpgm", "s_branch done_role")
k3 = strip(k3).replace("k3_end:\n", f"""    s_cmp_lg_u32 s2, 0
    s_cbranch_scc1 k3_end
    s_cmp_lg_u32 s26, 0
    s_cbranch_scc1 k3_end
    s_load_dword s92, s[96:97], 160
    s_mov_b32 s93, 0
    s_waitcnt lgkmcnt(0)
dg2:
    s_memrealtime s[88:89]
    s_add_u32 s93, s93, 1
    s_waitcnt lgkmcnt(0)
    s_cmp_gt_u32 s93, 20000
    s_cbranch_scc1 k3_end
    s_sub_u32 s88, s88, s92
    s_cmp_lt_u32 s88, {T}
    s_cbranch_scc1 dg2
k3_end:
""")
entry = f""".globl {NAME}
.p2align 8
.type {NAME},@function
{NAME}:
    s_memrealtime s[88:89]
    s_cmp_ge_u32 s2, 768
    s_cbranch_scc1 all_end
    s_load_dwordx2 s[96:97], s[0:1], 72
    v_lshrrev_b32 v1, 6, v0
    v_mov_b32 v4, 160832
    v_readfirstlane_b32 s98, v1
    s_waitcnt lgkmcnt(0)
    s_cmp_lg_u32 s98, 0
    s_cbranch_scc1 have_ticket
    s_mov_b64 exec, 1
    v_mov_b32 v2, 0
    v_mov_b32 v3, 1
    global_atomic_add v3, v2, v3, s[96:97] offset:128 sc0 sc1
    s_waitcnt vmcnt(0)
    v_readfirstlane_b32 s99, v3
    s_nop 3
    s_cmp_lg_u32 s99, 0
    s_cbranch_scc1 not_first
    v_mov_b32 v5, s88
    global_store_dword v2, v5, s[96:97] offset:160 sc1
not_first:
    s_lshr_b32 s4, s99, 8
    s_cmp_eq_u32 s4, 0
    s_cbranch_scc1 polled
    s_lshl_b32 s4, s4, 2
    v_mov_b32 v2, s4
    s_mov_b32 s5, 0
poll:
    s_sleep 32
    global_load_dword v5, v2, s[96:97] offset:128 sc1
    s_add_u32 s5, s5, 1
    s_waitcnt vmcnt(0)
    v_readfirstlane_b32 s6, v5
    s_cmp_gt_u32 s5, 20000
    s_cbranch_scc1 polled
    s_cmp_lt_u32 s6, 3072
    s_cbranch_scc1 poll
polled:
    ds_write_b32 v4, v3
    s_mov_b64 exec, -1
    buffer_inv sc1
    s_waitcnt vmcnt(0) lgkmcnt(0)
have_ticket:
    s_barrier
    ds_read_b32 v3, v4
    s_waitcnt lgkmcnt(0)
    v_readfirstlane_b32 s99, v3
    s_nop 3
    s_and_b32 s2, s99, 255
    s_lshr_b32 s99, s99, 8
    s_barrier
    s_cmp_eq_u32 s99, 0
    s_cbranch_scc1 qkv_kernel
    s_cmp_eq_u32 s99, 1
    s_cbranch_scc1 attn_kernel
    s_cmp_lt_u32 s98, 10
    s_cbranch_scc1 oproj_kernel
all_end:
    s_endpgm
done_role:
    s_waitcnt vmcnt(0) lgkmcnt(0)
    s_mov_b64 exec, 1
    s_lshl_b32 s99, s99, 2
    v_mov_b32 v2, s99
    v_mov_b32 v3, 1
    global_atomic_add v2, v3, s[96:97] offset:132 sc1
    s_endpgm
"""
out = hdr + '.amdgcn_target "amdgcn-amd-amdhsa--gfx950"\n.text\n' + entry + k1 + k2 + k3 + f""".section .rodata,"a"
.p2align 6
.amdhsa_kernel {NAME}
  .amdhsa_next_free_vgpr 168
  .amdhsa_next_free_sgpr 102
  .amdhsa_accum_offset 168
  .amdhsa_group_segment_fixed_size 0
  .amdhsa_kernarg_size 88
  .amdhsa_user_sgpr_count 2
  .amdhsa_user_sgpr_kernarg_segment_ptr 1
  .amdhsa_system_sgpr_workgroup_id_x 1
.end_amdhsa_kernel
"""
open(sys.argv[2], "w").write(out)
```
